```python
import torch

def _softmax(x, axis=-1):
    return torch.softmax(x, dim=axis)
def _gelu(x):
    return torch.nn.functional.gelu(x, approximate="tanh")
def _silu(x):
    return torch.nn.functional.silu(x)
def _sigmoid(x):
    return torch.sigmoid(x)
def _layernorm(x, axis=-1, eps=1e-5):
    m = x.mean(dim=axis, keepdim=True)
    v = x.var(dim=axis, keepdim=True, unbiased=False)
    return (x - m) / torch.sqrt(v + eps)
def _scatter_add(tgt, idx, src, axis=0):
    return tgt.clone().index_add_(axis, idx, src)
def _segment_sum(src, seg, n):
    out = torch.zeros((n,) + src.shape[1:], dtype=src.dtype)
    return out.index_add_(0, seg, src)
def _pad(x, pw):
    flat = tuple(v for pair in reversed(pw) for v in pair)
    return torch.nn.functional.pad(x, flat)

kernel_name = 'gated_mix__ssm_conv_h3__dense_activation_relu__prompt'

def setup_inputs():

    _w = (lambda a: (lambda t: t.to(torch.bfloat16) if t.is_floating_point() else t)(torch.as_tensor(a)))
    def _A_setup():
        B, S, D = 1, 2048, 1024
        ks = 4
        return {
            "q": _w((lambda *s: torch.randn(*s, dtype=torch.bfloat16) * 0.05)(B, S, D)),
            "k": _w((lambda *s: torch.randn(*s, dtype=torch.bfloat16) * 0.8)(B, S, D)),
            "v": _w((lambda *s: torch.randn(*s, dtype=torch.bfloat16) * 0.8)(B, S, D)),
            "shift_k": _w((lambda *s: torch.randn(*s, dtype=torch.bfloat16) * 0.8)(D, ks) * 0.5),
            "ssm_k": _w((lambda *s: torch.randn(*s, dtype=torch.bfloat16) * 0.8)(D, S) * (1.0 / S ** 0.5)),
            "ssm_D": _w((lambda *s: torch.randn(*s, dtype=torch.bfloat16) * 0.8)(D)),
        }
    _A_in = _A_setup()

    def _B_setup():
        B, S, D, Dff = 1, 2048, 1024, 3584
        return {
            "x": _w((lambda *s: torch.randn(*s, dtype=torch.bfloat16) * 0.05)(B, S, D)),
            "w1": _w((lambda *s: torch.randn(*s, dtype=torch.bfloat16) * 0.05)(D, Dff)),
            "w2": _w((lambda *s: torch.randn(*s, dtype=torch.bfloat16) * 0.05)(Dff, D)),
        }
    _B_in = _B_setup()

    return {
        "A_q": _A_in["q"],
        "A_k": _A_in["k"],
        "A_v": _A_in["v"],
        "A_shift_k": _A_in["shift_k"],
        "A_ssm_k": _A_in["ssm_k"],
        "A_ssm_D": _A_in["ssm_D"],
        "B_x": _B_in["x"],
        "B_w1": _B_in["w1"],
        "B_w2": _B_in["w2"],
        "gate_w": _w((lambda *s: torch.randn(*s, dtype=torch.bfloat16) * 0.05)(1024) * 16.0),
    }

def reference(A_q, A_k, A_v, A_shift_k, A_ssm_k, A_ssm_D, B_x, B_w1, B_w2, gate_w):
    def _A_ref(q, k, v, shift_k, ssm_k, ssm_D):
        B, S, D = q.shape
        ks = shift_k.shape[-1]
        k_pad = _pad(k, ((0, 0), (ks - 1, 0), (0, 0)))
        k_shift = torch.zeros_like(k)
        for t in range(ks):
            k_shift = k_shift + k_pad[:, t:t + S, :] * shift_k[:, ks - 1 - t][None, None, :]
        kv = k_shift * v
        L = 2 * S
        kv_pad = _pad(kv, ((0, 0), (0, S), (0, 0)))
        kf_pad = _pad(ssm_k, ((0, 0), (0, S)))
        kv_f = (lambda x, axes=(-2,-1): torch.fft.rfft2(x.float(), dim=axes))(kv_pad[:, None, :, :], axes=(1, 2))
        kf_f = (lambda x, axes=(-2,-1): torch.fft.rfft2(x.float(), dim=axes))(kf_pad[:, None, :], axes=(1, 2))
        kf_f = (lambda x, *d: x.permute(*d))(kf_f, 1, 2, 0)
        y_f = kv_f * kf_f[None, :, :, :]
        y = (lambda x, s, axes=(-2,-1): torch.fft.irfft2(x, s=s, dim=axes).to(torch.bfloat16))(y_f, (1, L), axes=(1, 2))[:, 0, :S, :]
        y = y + kv * ssm_D[None, None, :]
        return q * y

    def _B_ref(x, w1, w2):
        h = torch.einsum("bsd,df->bsf", x, w1)
        zero = torch.zeros_like(h)
        h = torch.maximum(h, zero)
        return torch.einsum("bsf,fd->bsd", h, w2)

    x = A_q
    g = _sigmoid((x * gate_w).sum(-1, keepdims=True))
    a = _A_ref(x, A_k, A_v, A_shift_k, A_ssm_k, A_ssm_D)
    b = _B_ref(x, B_w1, B_w2)
    return g * a + (1 - g) * b
```

```python
class Asm:
    def __init__(self):
        self.l = []
    def __call__(self, s):
        for x in s.split("\n"):
            x = x.strip()
            if x: self.l.append(x if x.endswith(":") else "    " + x)
    def text(self):
        return "\n".join(self.l)

def vr(a, n=1):
    return f"v{a}" if n == 1 else f"v[{a}:{a+n-1}]"
def sr(a, n=1):
    return f"s{a}" if n == 1 else f"s[{a}:{a+n-1}]"

def srd(A, d, base, nbytes, off=0):
    if off:
        A(f"s_add_u32 s{d}, s{base}, {off}\ns_addc_u32 s{d+1}, s{base+1}, 0")
    else:
        A(f"s_mov_b32 s{d}, s{base}\ns_mov_b32 s{d+1}, s{base+1}")
    A(f"s_mov_b32 s{d+2}, {nbytes}\ns_mov_b32 s{d+3}, 0x20000")

def kernel_text(name, body, vgpr=256, sgpr=102, accum=None):
    if accum is None:
        accum = min(256, (vgpr + 3) // 4 * 4)
    return f""".text
.globl {name}
.p2align 8
.type {name},@function
{name}:
{body}
    s_endpgm
.section .rodata,"a"
.p2align 6
.amdhsa_kernel {name}
  .amdhsa_next_free_vgpr {vgpr}
  .amdhsa_next_free_sgpr {sgpr}
  .amdhsa_accum_offset {accum}
  .amdhsa_group_segment_fixed_size 0
  .amdhsa_kernarg_size 104
  .amdhsa_user_sgpr_count 2
  .amdhsa_user_sgpr_kernarg_segment_ptr 1
  .amdhsa_system_sgpr_workgroup_id_x 1
.end_amdhsa_kernel
"""

K_Q, K_K, K_V, K_SHIFT, K_SSMK, K_SSMD, K_BX, K_W1, K_W2, K_GW, K_OUT, K_DBG, K_WS = [8*i for i in range(13)]
S, D, F = 2048, 1024, 3584
WS_H = 0
WS_U = 16 << 20
WS_Z = 20 << 20
WS_G = 24 << 20
WS_P = 32 << 20
WS_DIAG = 128 << 20

def interleave(main, fill, start=0, every=1):
    out = []; fi = 0
    for i, m in enumerate(main):
        out.append(m)
        if i >= start and (i - start) % every == 0 and fi < len(fill):
            out.append(fill[fi]); fi += 1
    out += fill[fi:]
    return out
```

```python
from common import *
from gemm1 import stamp, dump_stamps

L_RAW = 256
L_HH = L_RAW + 16384
HP = 4608
L_UT = L_HH + 4*HP
CP = 4160
UP = 2*CP
L_END = L_UT + 4*UP
ZP = 4096 + 32

def gen_conv(name="conv_kernel", diag=False, store_flags="", load_flags=""):
    A = Asm()
    A("s_cmp_ge_u32 s2, 256\ns_cbranch_scc1 CV_end")
    stamp(A, diag, 0)
    A(f"s_load_dwordx4 s[4:7], s[0:1], {K_SSMK}\ns_load_dwordx2 s[14:15], s[0:1], {K_WS}")
    A("v_lshrrev_b32 v1, 6, v0\nv_and_b32 v0, 63, v0\nv_readfirstlane_b32 s22, v1")
    A("s_waitcnt lgkmcnt(0)")
    SH_, SU_, SZ_ = 32, 36, 40
    srd(A, SH_, 4, D*S*2); srd(A, SU_, 14, S*D*2, WS_U); srd(A, SZ_, 14, S*D*2, WS_Z)
    if diag: srd(A, 60, 14, 1 << 20, WS_DIAG)
    A("s_lshl_b32 s23, s2, 3\ns_add_u32 s6, s6, s23\ns_addc_u32 s7, s7, 0\ns_load_dwordx2 s[8:9], s[6:7], 0")
    A("v_lshlrev_b32 v1, 4, v0")
    A("s_lshl_b32 s23, s2, 14\ns_lshl_b32 s24, s22, 12\ns_add_u32 s23, s23, s24")
    A(f"s_add_u32 m0, s24, {L_RAW}\ns_nop 0")
    for i in range(4): A(f"buffer_load_dwordx4 v1, s[{SU_}:{SU_+3}], s23 offen offset:{1024*i} {load_flags} lds")
    A(f"s_mul_i32 s25, s22, {HP}\ns_add_u32 m0, s25, {L_HH+512}\ns_nop 0")
    for i in range(4): A(f"buffer_load_dwordx4 v1, s[{SH_}:{SH_+3}], s23 offen offset:{1024*i} lds")
    A("v_mov_b32 v4, 0\nv_mov_b32 v5, 0")
    A(f"v_lshlrev_b32 v2, 3, v0\nv_add_u32 v2, s25, v2\nds_write_b64 v2, v[4:5] offset:{L_HH}")
    A("v_lshlrev_b32 v2, 2, v0\nds_write_b32 v2, v4")
    A(f"s_mul_i32 s26, s22, {UP}\nv_and_b32 v2, 15, v0\nv_lshlrev_b32 v2, 2, v2\nv_add_u32 v2, s26, v2")
    A(f"ds_write_b32 v2, v4 offset:{L_UT+4096}\nds_write_b32 v2, v4 offset:{L_UT+CP+4096}")
    A("v_and_b32 v2, 15, v0\nv_lshrrev_b32 v3, 4, v0\nv_and_b32 v6, 3, v0\nv_lshrrev_b32 v7, 2, v2")
    A("v_lshlrev_b32 v8, 2, v3\nv_add_u32 v8, v8, v6\nv_lshlrev_b32 v8, 3, v8\nv_add_u32 v8, v8, v7")
    A("s_lshl_b32 s27, s22, 9\ns_sub_u32 s27, 1663, s27")
    GA = 10
    for c in range(2):
        for h in range(2):
            g = GA + 2*c + h
            A(f"v_sub_u32 v9, s27, v8\nv_subrev_u32 v9, {c+4*h}, v9")
            A(f"v_ashrrev_i32 v{g}, 5, v9\nv_lshlrev_b32 v{g}, 8, v{g}")
            A(f"v_and_b32 v14, 2, v9\nv_lshlrev_b32 v14, 6, v14\nv_add_u32 v{g}, v{g}, v14")
            A(f"v_and_b32 v14, 28, v9\nv_lshlrev_b32 v14, 2, v14\nv_add_u32 v{g}, v{g}, v14")
            A(f"v_and_b32 v14, 1, v9\nv_lshlrev_b32 v14, 3, v14\nv_add_u32 v{g}, v{g}, v14\nv_add_u32 v{g}, {L_RAW}, v{g}")
    A(f"v_lshlrev_b32 v14, 2, v3\nv_add_u32 v14, v14, v7\nv_lshlrev_b32 v14, 4, v14\nv_mul_u32_u24 v15, {UP}, v6\nv_add_u32 v14, v14, v15")
    A("s_lshl_b32 s27, s22, 10\nv_add_u32 v14, s27, v14")
    A(f"v_sub_u32 v15, 15, v2\nv_lshlrev_b32 v16, 3, v3\nv_add_u32 v15, v15, v16\nv_and_b32 v16, 1, v15\nv_mul_u32_u24 v16, {CP}, v16")
    A(f"v_and_b32 v15, 0xfe, v15\nv_lshlrev_b32 v15, 1, v15\nv_add_u32 v15, v15, v16\nv_add_u32 v15, s26, v15")
    AB = 20
    for qq in range(4):
        A(f"v_add_u32 v{AB+qq}, {L_UT + 3072 - 1024*qq}, v15")
    BB = 24
    A(f"v_lshlrev_b32 v16, 5, v2\nv_lshlrev_b32 v17, 4, v3\nv_add_u32 v16, v16, v17\nv_add_u32 v16, s25, v16\nv_add_u32 v{BB}, {L_HH}, v16")
    DB = 25
    A(f"v_lshlrev_b32 v16, 5, v2\nv_lshlrev_b32 v17, 3, v3\nv_add_u32 v16, v16, v17\nv_sub_u32 v{DB}, {L_UT+504}, v16\nv_add_u32 v{DB}, s26, v{DB}")
    ZW = 26
    A(f"s_mul_i32 s28, s22, {ZP}\nv_add_u32 v{ZW}, s28, v16\nv_add_u32 v{ZW}, {L_HH}, v{ZW}")
    ZR = 27
    A(f"v_mul_u32_u24 v16, {ZP}, v7\nv_lshlrev_b32 v17, 6, v3\nv_add_u32 v16, v16, v17\nv_lshlrev_b32 v17, 3, v6\nv_add_u32 v16, v16, v17")
    A(f"s_lshl_b32 s28, s22, 10\ns_add_u32 s28, s28, {L_HH}\nv_add_u32 v{ZR}, s28, v16")
    A("s_waitcnt vmcnt(4) lgkmcnt(0)\ns_barrier")
    stamp(A, diag, 1)
    A("s_cmp_lt_u32 s22, 2\ns_cselect_b32 s10, s8, s9\ns_bitcmp1_b32 s22, 0\ns_cselect_b32 s11, 16, 0\ns_lshr_b32 s10, s10, s11\ns_and_b32 s10, s10, 0xffff\ns_lshl_b32 s11, s10, 16")
    T = 64
    for c in range(2):
        for b in range(4):
            for h in range(2):
                A(f"ds_read_b64_tr_b16 {vr(T+(c*4+b)*4+2*h,2)}, v{GA+2*c+h} offset:{(3-b)*1024}")
    for c in range(2):
        for b in range(4):
            A(f"s_waitcnt lgkmcnt({min(15, 14 - 2*(c*4+b) + (c*4+b))})")
            A(f"ds_write_b128 v14, {vr(T+(c*4+b)*4,4)} offset:{L_UT + c*CP + b*256}")
    A("s_waitcnt vmcnt(0) lgkmcnt(0)\ns_barrier")
    stamp(A, diag, 2)
    ACC, S0, S1 = 32, 64, 128
    def reads(st, r):
        L = []
        for q in range(8):
            L.append(f"ds_read_b128 {vr(st+32+4*q,4)}, v{BB} offset:{512*q - 64*r + 480}")
            o = ((1 - (q & 1))*512 + (7 - r)*64)//4
            L.append(f"ds_read2_b32 {vr(st+4*q,2)}, v{AB+q//2} offset0:{o} offset1:{o+1}")
            L.append(f"ds_read2_b32 {vr(st+4*q+2,2)}, v{AB+q//2} offset0:{o+2} offset1:{o+3}")
        return L
    def mfmas(st):
        return [f"v_mfma_f32_16x16x32_bf16 {vr(ACC+4*(q+e),4)}, {vr(st+4*q,4)}, {vr(st+32+4*e,4)}, {vr(ACC+4*(q+e),4)}"
                for q in range(8) for e in range(8-q)]
    for p in range(8): A(f"ds_read_b64 {vr(S1+2*p,2)}, v{DB} offset:{(7-p)*512}")
    for x in reads(S0, 0): A(x)
    A("s_waitcnt lgkmcnt(15)")
    A("s_waitcnt lgkmcnt(0)")
    for p in range(8):
        A(f"v_dot2_f32_bf16 v{ACC+4*p+0}, v{S1+2*p+1}, s11, 0\nv_dot2_f32_bf16 v{ACC+4*p+1}, v{S1+2*p+1}, s10, 0")
        A(f"v_dot2_f32_bf16 v{ACC+4*p+2}, v{S1+2*p}, s11, 0\nv_dot2_f32_bf16 v{ACC+4*p+3}, v{S1+2*p}, s10, 0")
    A("s_nop 2")
    stamp(A, diag, 3)
    for r in range(8):
        cur, nxt = (S0, S1) if r % 2 == 0 else (S1, S0)
        for x in interleave(mfmas(cur), reads(nxt, r+1) if r < 7 else []): A(x)
        A("s_waitcnt lgkmcnt(0)")
    stamp(A, diag, 4)
    A("s_nop 7\ns_barrier")
    for p in range(8):
        A(f"v_cvt_pk_bf16_f32 v{S0+2*p}, v{ACC+4*p}, v{ACC+4*p+1}\nv_cvt_pk_bf16_f32 v{S0+2*p+1}, v{ACC+4*p+2}, v{ACC+4*p+3}")
        A(f"ds_write_b64 v{ZW}, {vr(S0+2*p,2)} offset:{512*p}")
    A("s_waitcnt lgkmcnt(0)\ns_barrier")
    for b in range(4):
        for h in range(2): A(f"ds_read_b64_tr_b16 {vr(S1+4*b+2*h,2)}, v{ZR} offset:{b*256+h*32}")
    for b in range(4):
        A(f"s_waitcnt lgkmcnt({6-2*b})")
        A(f"buffer_store_dwordx4 {vr(S1+4*b,4)}, v1, s[{SZ_}:{SZ_+3}], s23 offen offset:{1024*b} {store_flags}")
    if diag:
        stamp(A, diag, 5)
        A("s_waitcnt vmcnt(0)")
        stamp(A, diag, 6)
        dump_stamps(A, 7, 22)
    A("CV_end:")
    return kernel_text(name, A.text(), vgpr=192), 256, L_END
```

```python
from common import *

XS = 16384
WSB = 28672
STG = XS + WSB
NSLOT = 3

def stamp(A, diag, idx):
    if diag:
        A(f"s_memtime s[{64+4*idx}:{65+4*idx}]\ns_memrealtime s[{66+4*idx}:{67+4*idx}]")
def dump_stamps(A, n, wavereg, nwaves_log2=3):
    A("s_waitcnt lgkmcnt(0)")
    for i in range(8):
        if i < n:
            A(f"v_mov_b32 v{4+i}, s{64+4*i}\nv_mov_b32 v{12+i}, s{66+4*i}")
        else:
            A(f"v_mov_b32 v{4+i}, 0\nv_mov_b32 v{12+i}, 0")
    A(f"s_lshl_b32 s37, s2, {nwaves_log2}\ns_add_u32 s37, s37, s{wavereg}\ns_lshl_b32 s37, s37, 6\nv_mov_b32 v2, 0")
    for i in range(4):
        A(f"buffer_store_dwordx4 v[{4+4*i}:{7+4*i}], v2, s[60:63], s37 offen offset:{16*i}")

def gen_gemm1(name="gemm1_kernel", diag=False, xcdmap="4x8", variant="V2", store_flags="", prio=True):
    A = Asm()
    nw = 8 if variant == "V2" else 4
    A("s_cmp_ge_u32 s2, 256\ns_cbranch_scc1 G1_end")
    stamp(A, diag, 0)
    A(f"s_load_dwordx2 s[4:5], s[0:1], {K_Q}\ns_load_dwordx2 s[6:7], s[0:1], {K_W1}\ns_load_dwordx2 s[20:21], s[0:1], {K_WS}")
    A("v_lshrrev_b32 v1, 6, v0\nv_and_b32 v0, 63, v0\nv_readfirstlane_b32 s22, v1")
    A("s_and_b32 s23, s2, 7\ns_lshr_b32 s24, s2, 3")
    if xcdmap == "4x8":
        A("s_lshr_b32 s25, s23, 1\ns_lshl_b32 s25, s25, 2\ns_and_b32 s26, s24, 3\ns_add_u32 s25, s25, s26")
        A("s_and_b32 s26, s23, 1\ns_lshl_b32 s26, s26, 3\ns_lshr_b32 s27, s24, 2\ns_add_u32 s26, s26, s27")
    elif xcdmap == "8x4":
        A("s_and_b32 s25, s23, 1\ns_lshl_b32 s25, s25, 3\ns_and_b32 s26, s24, 7\ns_add_u32 s25, s25, s26")
        A("s_lshr_b32 s26, s23, 1\ns_lshl_b32 s26, s26, 2\ns_lshr_b32 s27, s24, 3\ns_add_u32 s26, s26, s27")
    elif xcdmap == "2x16":
        A("s_lshl_b32 s25, s23, 1\ns_and_b32 s26, s24, 1\ns_add_u32 s25, s25, s26\ns_lshr_b32 s26, s24, 1")
    MB, NB = 25, 26
    A("s_waitcnt lgkmcnt(0)")
    stamp(A, diag, 1)
    srd(A, 8, 4, S*D*2); srd(A, 12, 6, D*F*2); srd(A, 16, 20, S*F*2, WS_H)
    if diag:
        srd(A, 60, 20, 1 << 20, WS_DIAG)
    VX, VW = 236, 240
    A("s_and_b32 s28, s22, 3")
    A(f"s_lshl_b32 s29, s{MB}, 7\ns_lshl_b32 s30, s28, 5\ns_add_u32 s29, s29, s30")
    A("v_lshrrev_b32 v2, 3, v0\nv_add_u32 v2, s29, v2\nv_lshlrev_b32 v2, 11, v2")
    A("v_and_b32 v3, 7, v0\nv_lshrrev_b32 v4, 4, v0\nv_xor_b32 v3, v3, v4")
    for i in range(4):
        A(f"v_xor_b32 v5, {4*(i&1)}, v3\nv_lshlrev_b32 v5, 4, v5\nv_add_u32 v5, v5, v2\nv_add_u32 v{VX+i}, {i*8*2048}, v5")
    A(f"s_mul_i32 s29, s{NB}, 448\ns_mul_i32 s30, s28, {16*F*2}\ns_add_u32 s29, s29, s30")
    A(f"s_mov_b32 s31, {F*2}")
    for j in range(7):
        A(f"v_add_u32 v2, {j*64}, v0\nv_mul_u32_u24 v3, 2341, v2\nv_lshrrev_b32 v3, 16, v3")
        A("v_mul_u32_u24 v4, 28, v3\nv_sub_u32 v4, v2, v4")
        A("v_lshrrev_b32 v5, 2, v3\nv_and_b32 v5, 2, v5\nv_xor_b32 v4, v4, v5\nv_lshlrev_b32 v4, 4, v4")
        A(f"v_mul_lo_u32 v3, v3, s31\nv_add_u32 v3, v3, v4\nv_add_u32 v{VW+j}, s29, v3")
    A("s_lshl_b32 s32, s28, 12")
    A(f"s_mul_i32 s33, s28, 7168\ns_add_u32 s33, s33, {XS}")
    A("s_mov_b32 s34, 0\ns_mov_b32 s35, 0\ns_mov_b32 s36, 0")
    def dma_list():
        L = []
        for i in range(4):
            L.append(f"s_add_u32 m0, s38, {i*1024}\ns_nop 0\nbuffer_load_dwordx4 v{VX+i}, s[8:11], s34 offen lds")
        for j in range(7):
            L.append(f"s_add_u32 m0, s39, {j*1024}\ns_nop 0\nbuffer_load_dwordx4 v{VW+j}, s[12:15], s35 offen lds")
        return L
    dma_pre = "s_add_u32 s38, s36, s32\ns_add_u32 s39, s36, s33"
    dma_post = f"s_add_u32 s34, s34, 128\ns_add_u32 s35, s35, {64*F*2}\ns_add_u32 s36, s36, {STG}\ns_cmp_eq_u32 s36, {NSLOT*STG}\ns_cselect_b32 s36, 0, s36"
    def issue_stage():
        A(dma_pre)
        for x in dma_list(): A(x)
        A(dma_post)
    if variant == "V2":
        A("s_cmp_lt_u32 s22, 4\ns_cbranch_scc1 G1_compute")
        for st in range(3): issue_stage()
        A("s_waitcnt vmcnt(22)\ns_barrier")
        A("s_mov_b32 s40, 13")
        A("G1_ld_loop:")
        A("s_waitcnt vmcnt(11)\ns_barrier")
        issue_stage()
        A("s_sub_u32 s40, s40, 1\ns_cmp_lg_u32 s40, 0\ns_cbranch_scc1 G1_ld_loop")
        A("s_waitcnt vmcnt(11)\ns_barrier\ns_waitcnt vmcnt(0)\ns_barrier\ns_barrier")
        A("s_branch G1_end")
        A("G1_compute:")
        if prio: A("s_setprio 1")
    else:
        for st in range(3): issue_stage()
    ACC = 0
    ACC, SP, SQ = 8, 120, 164
    BX0, BX1, BWE, BWO, BWS = 208, 209, 210, 211, 212
    WX0, WX1, WWE, WWO, WWS = 213, 214, 215, 216, 217
    A("s_and_b32 s41, s22, 1\ns_lshr_b32 s42, s22, 1\ns_and_b32 s42, s42, 1")
    A("v_and_b32 v2, 15, v0\nv_lshrrev_b32 v3, 4, v0")
    A("s_lshl_b32 s43, s41, 13")
    A("v_lshrrev_b32 v4, 1, v2\nv_xor_b32 v4, v4, v3\nv_lshlrev_b32 v4, 4, v4\nv_lshlrev_b32 v5, 7, v2\nv_add_u32 v4, v4, v5")
    A(f"v_add_u32 v{BX0}, s43, v4\nv_xor_b32 v{BX1}, 64, v{BX0}")
    A("v_lshlrev_b32 v4, 3, v3\nv_lshrrev_b32 v5, 2, v2\nv_add_u32 v4, v4, v5\nv_mul_u32_u24 v4, 448, v4")
    A(f"v_and_b32 v5, 3, v2\nv_lshlrev_b32 v5, 3, v5\nv_add_u32 v4, v4, v5\nv_add_u32 v4, {XS}, v4")
    A("v_and_b32 v5, 1, v3\nv_lshlrev_b32 v5, 5, v5")
    A("s_lshl_b32 s43, s42, 8")
    A(f"v_add_u32 v6, s43, v4\nv_add_u32 v{BWE}, v6, v5\nv_sub_u32 v{BWO}, v6, v5")
    A("s_add_u32 s43, s42, 6\ns_lshl_b32 s43, s43, 5")
    A(f"v_xor_b32 v5, s43, v5\nv_add_u32 v{BWS}, v4, v5")
    for r in range(112): A(f"v_mov_b32 v{ACC+r}, 0")
    A("s_mov_b32 s44, 0")
    def upd():
        return [f"v_add_u32 v{w}, s44, v{b}" for w, b in ((WX0,BX0),(WX1,BX1),(WWE,BWE),(WWO,BWO),(WWS,BWS))]
    def reads(st, kk):
        L = []
        wx = WX0 if kk == 0 else WX1
        xs = [f"ds_read_b128 {vr(st+28+4*ts,4)}, v{wx} offset:{ts*2048}" for ts in range(4)]
        ws = []
        for tl in range(7):
            base = WWS if tl == 6 else (WWE if tl % 2 == 0 else WWO)
            off = (0 if tl == 6 else tl*32) + kk*32*448
            ws.append([f"ds_read_b64_tr_b16 {vr(st+4*tl+2*h,2)}, v{base} offset:{off + h*4*448}" for h in range(2)])
        L = ws[0] + xs
        for tl in range(1, 7): L += ws[tl]
        return L
    def mfmas(st):
        return [f"v_mfma_f32_16x16x32_bf16 {vr(ACC+(tl*4+ts)*4,4)}, {vr(st+4*tl,4)}, {vr(st+28+4*ts,4)}, {vr(ACC+(tl*4+ts)*4,4)}"
                for tl in range(7) for ts in range(4)]
    slot_adv = f"s_add_u32 s44, s44, {STG}\ns_cmp_eq_u32 s44, {NSLOT*STG}\ns_cselect_b32 s44, 0, s44"
    for x in upd(): A(x)
    stamp(A, diag, 2)
    if variant == "V1": A("s_waitcnt vmcnt(22)")
    A("s_barrier")
    stamp(A, diag, 3)
    for x in reads(SP, 0): A(x)
    A(slot_adv)
    A("s_waitcnt lgkmcnt(0)")
    if variant == "V2":
        A("s_mov_b32 s45, 16")
        A(".p2align 6\nG1_loop:")
        for x in interleave(mfmas(SP), reads(SQ, 1)): A(x)
        A("s_waitcnt lgkmcnt(0)\ns_barrier")
        m = mfmas(SQ)
        u = upd()
        fill = [u[2] + "\n" + u[0], u[3] + "\n" + u[4]]
        for x in interleave(m, fill + reads(SP, 0) + [u[1], slot_adv]): A(x)
        A("s_sub_u32 s45, s45, 1\ns_cmp_lg_u32 s45, 0\ns_waitcnt lgkmcnt(0)\ns_cbranch_scc1 G1_loop")
    else:
        def body(issue, vm):
            d = dma_list() if issue else []
            for x in interleave(mfmas(SP), reads(SQ, 1)): A(x)
            A(f"s_waitcnt vmcnt({vm}) lgkmcnt(0)\ns_barrier")
            m = mfmas(SQ); u = upd()
            fill = [u[2] + "\n" + u[0], u[3] + "\n" + u[4] + ("\n" + dma_pre if issue else "")]
            rd = reads(SP, 0)
            seq = []
            for i in range(max(len(rd), 2*len(d))):
                s_ = rd[i] if i < len(rd) else ""
                if i % 2 == 1 and i//2 < len(d): s_ += "\n" + d[i//2]
                seq.append(s_)
            tail = [u[1], slot_adv] + ([dma_post] if issue else [])
            for x in interleave(m, fill + seq + tail): A(x)
        A("s_mov_b32 s45, 13")
        A(".p2align 6\nG1_loop:")
        body(True, 11)
        A("s_sub_u32 s45, s45, 1\ns_cmp_lg_u32 s45, 0\ns_waitcnt lgkmcnt(0)\ns_cbranch_scc1 G1_loop")
        body(False, 11); A("s_waitcnt lgkmcnt(0)")
        body(False, 0); A("s_waitcnt lgkmcnt(0)")
        body(False, 0); A("s_waitcnt lgkmcnt(0)")
    stamp(A, diag, 4)
    A(f"s_mul_i32 s46, s{MB}, 112\ns_mul_i32 s47, s{NB}, 7\ns_add_u32 s46, s46, s47")
    A("s_add_u32 s48, s46, 3\ns_lshl_b32 s48, s48, 13")
    A("s_lshl_b32 s47, s42, 2\ns_add_u32 s46, s46, s47\ns_lshl_b32 s46, s46, 13")
    A("s_lshl_b32 s47, s41, 12\ns_add_u32 s46, s46, s47\ns_add_u32 s48, s48, s47")
    A("s_lshl_b32 s47, s42, 3\ns_add_u32 s48, s48, s47")
    A("v_lshlrev_b32 v2, 4, v0\ns_nop 4")
    T = SP
    n = 0
    for u in range(3):
        for ts in range(4):
            t = T + (n % 8)*4; n += 1
            for hh in range(2):
                a = ACC + ((2*u+hh)*4 + ts)*4
                A(f"v_cvt_pk_bf16_f32 v{t+2*hh}, v{a}, v{a+1}\nv_cvt_pk_bf16_f32 v{t+2*hh+1}, v{a+2}, v{a+3}")
            for r in range(4): A(f"v_pk_max_i16 v{t+r}, v{t+r}, 0")
            A(f"buffer_store_dwordx4 {vr(t,4)}, v2, s[16:19], s46 offen offset:{ts*1024} {store_flags}")
        A("s_add_u32 s46, s46, 8192")
    for ts in range(4):
        t = SQ + ts*2
        a = ACC + (6*4 + ts)*4
        A(f"v_cvt_pk_bf16_f32 v{t}, v{a}, v{a+1}\nv_cvt_pk_bf16_f32 v{t+1}, v{a+2}, v{a+3}")
        A(f"v_pk_max_i16 v{t}, v{t}, 0\nv_pk_max_i16 v{t+1}, v{t+1}, 0")
        A(f"buffer_store_dwordx2 {vr(t,2)}, v2, s[16:19], s48 offen offset:{ts*1024} {store_flags}")
    if diag:
        stamp(A, diag, 5)
        A("s_waitcnt vmcnt(0)")
        stamp(A, diag, 6)
        dump_stamps(A, 7, 22)
    A("G1_end:")
    return kernel_text(name, A.text(), vgpr=256), nw*64, NSLOT*STG
```

```python
from common import *
from gemm1 import stamp, dump_stamps

SLOT = 32768
def gen_gemm2(name="gemm2_kernel", n1=22, nslot=4, diag=False, hflags="", prio=True):
    n2 = 56 - 2*n1
    NT = n1 + n2
    A = Asm()
    A("s_cmp_ge_u32 s2, 256\ns_cbranch_scc1 G2_end")
    stamp(A, diag, 0)
    A(f"s_load_dwordx2 s[4:5], s[0:1], {K_Q}\ns_load_dwordx2 s[6:7], s[0:1], {K_W2}\ns_load_dwordx4 s[16:19], s[0:1], {K_OUT}\ns_load_dwordx2 s[20:21], s[0:1], {K_WS}")
    A("v_lshrrev_b32 v1, 6, v0\nv_and_b32 v0, 63, v0\nv_readfirstlane_b32 s22, v1")
    MB, DBK, KH = 25, 26, 27
    A(f"s_and_b32 s23, s2, 7\ns_lshr_b32 s24, s2, 3\ns_and_b32 s{KH}, s23, 1")
    A(f"s_lshr_b32 s{MB}, s23, 1\ns_lshl_b32 s{MB}, s{MB}, 2\ns_and_b32 s28, s24, 3\ns_add_u32 s{MB}, s{MB}, s28\ns_lshr_b32 s{DBK}, s24, 2")
    A("s_waitcnt lgkmcnt(0)")
    stamp(A, diag, 1)
    SH_, SW_ = 8, 12
    srd(A, SH_, 20, S*F*2, WS_H); srd(A, SW_, 6, F*D*2)
    if diag: srd(A, 60, 20, 1 << 20, WS_DIAG)
    A("s_cmp_lt_u32 s22, 4\ns_cbranch_scc1 G2_compute")
    A("s_and_b32 s28, s22, 3")
    VH, VW1, VW2 = 2, 4, 8
    A(f"v_lshlrev_b32 v{VH}, 4, v0")
    A(f"s_mul_i32 s34, s{MB}, {112*8192}\ns_lshl_b32 s29, s28, 12\ns_add_u32 s34, s34, s29\ns_add_u32 s40, s34, {2*n1*16384}")
    A(f"s_mul_i32 s29, s{KH}, {n1*16384}\ns_add_u32 s34, s34, s29")
    A(f"s_lshl_b32 s29, s28, 15\ns_lshl_b32 s30, s{DBK}, 8\ns_add_u32 s29, s29, s30")
    A("v_lshrrev_b32 v12, 4, v0\nv_and_b32 v13, 15, v0\nv_lshlrev_b32 v14, 1, v12\nv_xor_b32 v13, v13, v14\nv_lshlrev_b32 v12, 11, v12\nv_add_u32 v12, s29, v12")
    for i in range(4):
        A(f"v_xor_b32 v14, {8*(i&1)}, v13\nv_lshlrev_b32 v14, 4, v14\nv_add_u32 v14, v14, v12\nv_add_u32 v{VW1+i}, {i*4*2048}, v14")
    A(f"s_lshl_b32 s30, s{KH}, 7\ns_add_u32 s29, s29, s30")
    A("v_lshrrev_b32 v12, 3, v0\nv_lshlrev_b32 v12, 11, v12\nv_add_u32 v12, s29, v12\nv_and_b32 v13, 7, v0\nv_lshrrev_b32 v14, 4, v0\nv_lshlrev_b32 v14, 1, v14\nv_xor_b32 v13, v13, v14\nv_lshlrev_b32 v13, 4, v13")
    A(f"v_add_u32 v{VW2}, v12, v13\nv_add_u32 v{VW2+1}, {8*2048}, v{VW2}")
    A(f"s_mul_i32 s35, s{KH}, {n1*64*2048}")
    A(f"s_lshl_b32 s32, s28, 12\ns_add_u32 s33, s32, 16384\ns_lshl_b32 s41, s28, 11\ns_add_u32 s41, s41, 16384\ns_mov_b32 s36, 0")
    def issue(ph):
        A("s_add_u32 m0, s36, s32\ns_add_u32 s39, s36, " + ("s33" if ph == 1 else "s41"))
        for i in range(4): A(f"buffer_load_dwordx4 v{VH}, s[{SH_}:{SH_+3}], s34 offen offset:{1024*i} {hflags} lds")
        for i in range(4 if ph == 1 else 2):
            A(f"s_add_u32 m0, s39, {1024*i}\ns_nop 0\nbuffer_load_dwordx4 v{(VW1 if ph == 1 else VW2)+i}, s[{SW_}:{SW_+3}], s35 offen lds")
        A(f"s_add_u32 s34, s34, 16384\ns_add_u32 s35, s35, {64*2048}\ns_add_u32 s36, s36, {SLOT}\ns_cmp_eq_u32 s36, {nslot*SLOT}\ns_cselect_b32 s36, 0, s36")
    def cnt(st): return 8 if st < n1 else 6
    def switch():
        A(f"s_mov_b32 s34, s40\ns_mov_b32 s35, {2*n1*64*2048}")
    events = []
    issued = 0
    def do_issue(st):
        if st == n1: switch()
        issue(1 if st < n1 else 2)
    for st in range(2): do_issue(st)
    A(f"s_waitcnt vmcnt({cnt(1)})\ns_barrier")
    for st in range(2, nslot): do_issue(st)
    seq = []
    for k in range(1, NT+1):
        last_issued = min(k + nslot - 2, NT-1)
        w = sum(cnt(s_) for s_ in range(k+1, last_issued+1))
        st = k + nslot - 1
        seq.append((w, None if st >= NT else (1 if st < n1 else 2), st == n1))
    i = 0; lab = 0
    while i < len(seq):
        j = i
        while j < len(seq) and seq[j] == seq[i]: j += 1
        n = j - i; w, ph, sw = seq[i]
        if n > 1: A(f"s_mov_b32 s42, {n}\nG2_ld{lab}:")
        A(f"s_waitcnt vmcnt({w})\ns_barrier")
        if sw: switch()
        if ph: issue(ph)
        if n > 1: A(f"s_sub_u32 s42, s42, 1\ns_cmp_lg_u32 s42, 0\ns_cbranch_scc1 G2_ld{lab}")
        lab += 1; i = j
    A("s_branch G2_end")
    A("G2_compute:")
    if prio: A("s_setprio 1")
    ACC, SP, SQ = 8, 72, 104
    BH, BW1, BW2 = 136, 137, 141
    WH, WW = 143, 144
    A("s_and_b32 s41, s22, 1\ns_lshr_b32 s42, s22, 1")
    A("v_and_b32 v2, 15, v0\nv_lshrrev_b32 v3, 4, v0\nv_lshrrev_b32 v4, 2, v2\nv_and_b32 v5, 3, v2")
    A(f"s_lshl_b32 s43, s41, 12\nv_lshlrev_b32 v6, 4, v0\nv_add_u32 v{BH}, s43, v6")
    A("v_lshlrev_b32 v6, 2, v3\nv_add_u32 v6, v6, v4")
    A("v_lshlrev_b32 v5, 3, v5\nv_add_u32 v5, 16384, v5")
    A(f"s_lshl_b32 s43, s{KH}, 2\ns_lshl_b32 s44, s42, 1\ns_add_u32 s43, s43, s44")
    A("v_and_b32 v7, 7, v6\nv_xor_b32 v7, s43, v7\nv_lshlrev_b32 v1, 8, v6\nv_add_u32 v1, v1, v5")
    for tl in range(4):
        x = (tl & 1) + (4 if tl >= 2 else 0)
        A(f"v_xor_b32 v4, {x}, v7\nv_lshlrev_b32 v4, 5, v4\nv_add_u32 v{BW1+tl}, v4, v1")
    A("v_lshrrev_b32 v7, 1, v6\nv_and_b32 v7, 3, v7\nv_xor_b32 v7, s44, v7\nv_lshlrev_b32 v1, 7, v6\nv_add_u32 v1, v1, v5")
    for tl in range(2):
        A(f"v_xor_b32 v4, {tl}, v7\nv_lshlrev_b32 v4, 5, v4\nv_add_u32 v{BW2+tl}, v4, v1")
    for r in range(64): A(f"v_mov_b32 v{ACC+r}, 0")
    A("s_mov_b32 s44, 0")
    def upd(ph):
        L = [f"v_add_u32 v{WH}, s44, v{BH}"]
        for tl in range(4 if ph == 1 else 2): L.append(f"v_add_u32 v{WW+tl}, s44, v{(BW1 if ph == 1 else BW2)+tl}")
        return L
    def reads(st, kk, ph):
        pitch = 256 if ph == 1 else 128
        hs = [f"ds_read_b128 {vr(st+16+4*ts,4)}, v{WH} offset:{kk*8192+ts*1024}" for ts in range(4)]
        ws = [[f"ds_read_b64_tr_b16 {vr(st+4*tl+2*h,2)}, v{WW+tl} offset:{(32*kk+16*h)*pitch}" for h in range(2)] for tl in range(4 if ph == 1 else 2)]
        L = ws[0] + hs
        for x in ws[1:]: L += x
        return L
    def mfmas(st, ph):
        return [f"v_mfma_f32_16x16x32_bf16 {vr(ACC+(tl*4+ts)*4,4)}, {vr(st+4*tl,4)}, {vr(st+16+4*ts,4)}, {vr(ACC+(tl*4+ts)*4,4)}"
                for tl in range(4 if ph == 1 else 2) for ts in range(4)]
    slot_adv = f"s_add_u32 s44, s44, {SLOT}\ns_cmp_eq_u32 s44, {nslot*SLOT}\ns_cselect_b32 s44, 0, s44"
    def pairs(L): return ["\n".join(L[i:i+2]) for i in range(0, len(L), 2)]
    def body(ph, nph):
        r1 = reads(SQ, 1, ph)
        if ph == 2: r1 = pairs(r1)
        m = interleave(mfmas(SP, ph), r1 + [slot_adv])
        for x in m: A(x)
        A("s_waitcnt lgkmcnt(0)")
        for x in upd(nph): A(x)
        A("s_barrier")
        r0 = reads(SP, 0, nph)
        if ph == 2: r0 = pairs(r0)
        for x in interleave(mfmas(SQ, ph), r0): A(x)
    ph0 = 1 if n1 > 0 else 2
    for x in upd(ph0): A(x)
    stamp(A, diag, 2)
    A("s_barrier")
    stamp(A, diag, 3)
    for x in reads(SP, 0, ph0): A(x)
    A("s_waitcnt lgkmcnt(0)")
    SP_, SO_, SQ_, SZ_, SG_, SD_ = 48, 52, 56, 4, 28, 32
    srd(A, SO_, 16, S*D*2); srd(A, SQ_, 4, S*D*2); srd(A, SD_, 18, 256)
    srd(A, SP_, 20, 256*32768, WS_P); srd(A, SZ_, 20, S*D*2, WS_Z); srd(A, SG_, 20, 256*128, WS_G)
    VL = 148
    A(f"v_lshlrev_b32 v{VL}, 4, v0")
    if n1 > 0:
        if n1 > 1:
            A(f"s_mov_b32 s45, {n1-1}\n.p2align 6\nG2_loop1:")
            body(1, 1)
            A("s_sub_u32 s45, s45, 1\ns_cmp_lg_u32 s45, 0\ns_waitcnt lgkmcnt(0)\ns_cbranch_scc1 G2_loop1")
        body(1, 2)
        stamp(A, diag, 4)
        A("s_lshl_b32 s46, s2, 2\ns_add_u32 s46, s46, s22\ns_lshl_b32 s46, s46, 13\ns_add_u32 s47, s46, 4096\ns_nop 4")
        for i in range(8):
            A(f"buffer_store_dwordx4 {vr(ACC+32+4*i,4)}, v{VL}, s[{SP_}:{SP_+3}], s{46+i//4} offen offset:{1024*(i%4)} sc1")
        A("s_waitcnt lgkmcnt(0)")
    else:
        stamp(A, diag, 4)
    def signal():
        A("s_waitcnt vmcnt(0)")
        A("s_lshl_b32 s46, s2, 2\ns_add_u32 s46, s46, s22\ns_and_b32 s47, s46, 31\ns_lshl_b32 s47, 1, s47\ns_lshr_b32 s46, s46, 5\ns_lshl_b32 s46, s46, 2")
        A(f"v_mov_b32 v1, s47\ns_mov_b64 s[38:39], exec\ns_mov_b64 exec, 1\nbuffer_atomic_or v1, off, s[{SD_}:{SD_+3}], s46 sc1\ns_mov_b64 exec, s[38:39]")
    sig_at = min(n2, 5)
    if n2 > 0:
        if n1 > 0:
            A(f"s_mov_b32 s45, {sig_at}\n.p2align 6\nG2_loop2a:")
            body(2, 2)
            A("s_sub_u32 s45, s45, 1\ns_cmp_lg_u32 s45, 0\ns_waitcnt lgkmcnt(0)\ns_cbranch_scc1 G2_loop2a")
            signal()
        rem = n2 - (sig_at if n1 > 0 else 0)
        if rem > 0:
            A(f"s_mov_b32 s45, {rem}\n.p2align 6\nG2_loop2:")
            body(2, 2)
            A("s_sub_u32 s45, s45, 1\ns_cmp_lg_u32 s45, 0\ns_waitcnt lgkmcnt(0)\ns_cbranch_scc1 G2_loop2")
    else:
        signal()
    stamp(A, diag, 5)
    QR, ZR, GR, PR = 72, 88, 104, 152
    A(f"s_lshl_b32 s46, s{DBK}, 7\ns_lshl_b32 s47, s{KH}, 6\ns_add_u32 s46, s46, s47\ns_lshl_b32 s47, s42, 5\ns_add_u32 s46, s46, s47")
    A("v_and_b32 v4, 1, v3\nv_lshlrev_b32 v4, 4, v4\nv_lshrrev_b32 v5, 1, v3\nv_lshlrev_b32 v5, 3, v5\nv_add_u32 v4, v4, v5\nv_add_u32 v4, s46, v4")
    A(f"s_lshl_b32 s46, s{MB}, 7\ns_lshl_b32 s47, s41, 6\ns_add_u32 s46, s46, s47")
    A("v_add_u32 v5, s46, v2\nv_lshlrev_b32 v6, 11, v5\nv_lshlrev_b32 v7, 1, v4\nv_add_u32 v6, v6, v7")
    A("v_lshlrev_b32 v7, 12, v4\ns_lshl_b32 s47, s46, 3\nv_add_u32 v7, s47, v7\nv_lshlrev_b32 v1, 4, v2\nv_add_u32 v7, v7, v1")
    A("v_lshrrev_b32 v1, 3, v5\nv_lshlrev_b32 v1, 7, v1\nv_and_b32 v5, 7, v5\nv_lshlrev_b32 v5, 3, v5\nv_add_u32 v5, v5, v1")
    A("s_mov_b32 s47, 16384")
    for ts in range(4):
        A(f"s_mov_b32 s46, {ts*16*2048}\nbuffer_load_dwordx4 {vr(QR+4*ts,4)}, v6, s[{SQ_}:{SQ_+3}], s46 offen")
    for tp in range(2):
        A(f"buffer_load_dwordx4 {vr(ZR+8*tp,4)}, v7, s[{SZ_}:{SZ_+3}], 0 offen offset:{256*tp} {hflags}")
        A(f"buffer_load_dwordx4 {vr(ZR+8*tp+4,4)}, v7, s[{SZ_}:{SZ_+3}], s47 offen offset:{256*tp} {hflags}")
    for ts in range(4):
        A(f"buffer_load_dwordx2 {vr(GR+2*ts,2)}, v5, s[{SG_}:{SG_+3}], 0 offen offset:{256*ts} {hflags}")
    if n1 > 0:
        A("s_xor_b32 s46, s2, 1\ns_lshl_b32 s46, s46, 2\ns_add_u32 s46, s46, s22\ns_and_b32 s47, s46, 31\ns_lshr_b32 s37, s46, 5\ns_lshl_b32 s37, s37, 2\ns_mov_b32 s45, 0x4000")
        A(f"G2_poll:\nbuffer_load_dword v1, off, s[{SD_}:{SD_+3}], s37 sc1\ns_waitcnt vmcnt(0)\nv_readfirstlane_b32 s36, v1")
        A("s_sub_u32 s45, s45, 1\ns_cmp_eq_u32 s45, 0\ns_cbranch_scc1 G2_go\ns_bitcmp1_b32 s36, s47\ns_cbranch_scc0 G2_poll\nG2_go:")
        A("s_lshl_b32 s46, s46, 13\ns_add_u32 s47, s46, 4096")
        for i in range(8):
            A(f"buffer_load_dwordx4 {vr(PR+4*i,4)}, v{VL}, s[{SP_}:{SP_+3}], s{46+i//4} offen offset:{1024*(i%4)} sc1")
        for i in range(8):
            A(f"s_waitcnt vmcnt({7-i})")
            for j in range(4): A(f"v_add_f32 v{ACC+4*i+j}, v{ACC+4*i+j}, v{PR+4*i+j}")
    else:
        A("s_waitcnt vmcnt(0)")
    A("s_nop 1")
    T = 112
    for ts in range(4):
        X, Y = ACC + ts*4, ACC + 16 + ts*4
        for j in range(4): A(f"v_permlane16_swap_b32 v{X+j}, v{Y+j}")
        g, og = GR+2*ts, GR+2*ts+1
        for j in range(8):
            b = (X if j < 4 else Y) + (j & 3)
            q = QR + 4*ts + j//2
            z = ZR + 8*(ts//2) + 4*(j//4) + 2*(ts & 1) + (j & 3)//2
            if j % 2 == 0: A(f"v_lshlrev_b32 v{T}, 16, v{q}\nv_lshlrev_b32 v{T+1}, 16, v{z}")
            else: A(f"v_and_b32 v{T}, 0xffff0000, v{q}\nv_and_b32 v{T+1}, 0xffff0000, v{z}")
            A(f"v_mul_f32 v{T}, v{T}, v{T+1}\nv_mul_f32 v{b}, v{b}, v{og}\nv_fmac_f32 v{b}, v{T}, v{g}")
        O = 116 + 4*ts
        A(f"v_cvt_pk_bf16_f32 v{O}, v{X}, v{X+1}\nv_cvt_pk_bf16_f32 v{O+1}, v{X+2}, v{X+3}\nv_cvt_pk_bf16_f32 v{O+2}, v{Y}, v{Y+1}\nv_cvt_pk_bf16_f32 v{O+3}, v{Y+2}, v{Y+3}")
        A(f"s_mov_b32 s46, {ts*16*2048}\nbuffer_store_dwordx4 {vr(O,4)}, v6, s[{SO_}:{SO_+3}], s46 offen")
    if diag:
        stamp(A, diag, 6)
        A("s_waitcnt vmcnt(0)")
        stamp(A, diag, 7)
        dump_stamps(A, 8, 22)
    A("G2_end:")
    return kernel_text(name, A.text(), vgpr=192), 512, nslot*SLOT
```

```python
from common import *

def wg_coords(A, xcdmap="4x8", MB=25, NB=26):
    A("s_and_b32 s23, s2, 7\ns_lshr_b32 s24, s2, 3")
    assert xcdmap == "4x8"
    A(f"s_lshr_b32 s{MB}, s23, 1\ns_lshl_b32 s{MB}, s{MB}, 2\ns_and_b32 s27, s24, 3\ns_add_u32 s{MB}, s{MB}, s27")
    A(f"s_and_b32 s{NB}, s23, 1\ns_lshl_b32 s{NB}, s{NB}, 3\ns_lshr_b32 s27, s24, 2\ns_add_u32 s{NB}, s{NB}, s27")

def dpp_sum(A, regs):
    steps = ["row_shr:1 row_mask:0xf bank_mask:0xf bound_ctrl:0", "row_shr:2 row_mask:0xf bank_mask:0xf bound_ctrl:0",
             "row_shr:4 row_mask:0xf bank_mask:0xf bound_ctrl:0", "row_shr:8 row_mask:0xf bank_mask:0xf bound_ctrl:0",
             "row_bcast:15 row_mask:0xa bank_mask:0xf", "row_bcast:31 row_mask:0xc bank_mask:0xf"]
    for st in steps:
        A("s_nop 1")
        for r in regs: A(f"v_add_f32_dpp v{r}, v{r}, v{r} {st}")

def gen_prep(name="prep_kernel", store_flags=""):
    A = Asm()
    A("s_cmp_ge_u32 s2, 256\ns_cbranch_scc1 PP_end")
    A(f"s_load_dwordx4 s[4:7], s[0:1], {K_Q}\ns_load_dwordx4 s[8:11], s[0:1], {K_V}\ns_load_dwordx2 s[12:13], s[0:1], {K_GW}\ns_load_dwordx2 s[14:15], s[0:1], {K_WS}")
    A("v_lshrrev_b32 v1, 6, v0\nv_and_b32 v0, 63, v0\nv_readfirstlane_b32 s22, v1")
    wg_coords(A); MB, NB = 25, 26
    A("s_waitcnt lgkmcnt(0)")
    SQ_, SK_, SV_, SC_, SG_, SU_, SGO = 32, 36, 40, 44, 48, 52, 56
    srd(A, SQ_, 4, S*D*2); srd(A, SK_, 6, S*D*2); srd(A, SV_, 8, S*D*2); srd(A, SC_, 10, D*4*2); srd(A, SG_, 12, D*2)
    srd(A, SU_, 14, S*D*2, WS_U); srd(A, SGO, 14, 256*128, WS_G)
    A("v_lshrrev_b32 v1, 3, v0\nv_and_b32 v2, 7, v0")
    A(f"s_lshl_b32 s28, s{MB}, 7\ns_lshl_b32 s29, s22, 5\ns_add_u32 s28, s28, s29")
    A("v_lshlrev_b32 v3, 2, v1\nv_add_u32 v3, s28, v3\nv_lshlrev_b32 v3, 11, v3")
    A(f"s_lshl_b32 s29, s{NB}, 7\nv_lshlrev_b32 v4, 4, v2\nv_add_u32 v4, s29, v4")
    A("v_add_u32 v3, v3, v4\nv_add_u32 v5, 4096, v3\nv_subrev_u32 v6, 2048, v3\nv_subrev_u32 v7, 4096, v3\nv_subrev_u32 v8, 6144, v3")
    A("v_lshlrev_b32 v4, 2, v4")
    KR, VR, CR = 16, 44, 60
    kaddr = [(8,0),(7,0),(6,0),(3,0),(3,2048),(5,0),(5,2048)]
    for i,(r,o) in enumerate(kaddr): A(f"buffer_load_dwordx4 {vr(KR+4*i,4)}, v{r}, s[{SK_}:{SK_+3}], 0 offen offset:{o}")
    for i in range(4): A(f"buffer_load_dwordx4 {vr(CR+4*i,4)}, v4, s[{SC_}:{SC_+3}], 0 offen offset:{16*i}")
    for i,(r,o) in enumerate(kaddr[3:]): A(f"buffer_load_dwordx4 {vr(VR+4*i,4)}, v{r}, s[{SV_}:{SV_+3}], 0 offen offset:{o}")
    GX, GW = 76, 92
    A(f"s_lshl_b32 s28, s{MB}, 7\ns_lshl_b32 s29, s{NB}, 3\ns_add_u32 s28, s28, s29\ns_lshl_b32 s29, s22, 1\ns_add_u32 s28, s28, s29\ns_lshl_b32 s28, s28, 11")
    A("v_lshlrev_b32 v9, 4, v0")
    for i in range(4): A(f"buffer_load_dwordx4 {vr(GX+4*i,4)}, v9, s[{SQ_}:{SQ_+3}], s28 offen offset:{1024*i}")
    for i in range(2): A(f"buffer_load_dwordx4 {vr(GW+4*i,4)}, v9, s[{SG_}:{SG_+3}], 0 offen offset:{1024*i}")
    A(f"s_lshl_b32 s28, s{NB}, 18\ns_lshl_b32 s29, s{MB}, 10\ns_add_u32 s28, s28, s29\ns_lshl_b32 s29, s22, 8\ns_add_u32 s28, s28, s29")
    A("v_lshlrev_b32 v10, 15, v2\nv_lshlrev_b32 v11, 4, v1\nv_add_u32 v10, v10, v11\nv_add_u32 v10, s28, v10\nv_add_u32 v11, 16384, v10")
    A("s_mov_b32 s30, 0x05040100\ns_mov_b32 s31, 0x07060302")
    A("s_waitcnt vmcnt(6)")
    P, T, O = 100, 112, 128
    for w in range(4):
        for e in range(2):
            for j in range(6):
                A(f"v_perm_b32 v{P+6*e+j}, v{KR+4*j+w}, v{KR+4*(j+1)+w}, s{30+e}")
        for e in range(2):
            c = CR + 2*(2*w+e)
            for s_ in range(4): A(f"v_dot2_f32_bf16 v{T+4*e+s_}, v{P+6*e+s_}, v{c+1}, 0")
        for e in range(2):
            c = CR + 2*(2*w+e)
            for s_ in range(4): A(f"v_dot2_f32_bf16 v{T+4*e+s_}, v{P+6*e+s_+2}, v{c}, v{T+4*e+s_}")
        for s_ in range(4):
            A(f"v_lshlrev_b32 v{T+8+s_}, 16, v{VR+4*s_+w}\nv_and_b32 v{T+12+s_}, 0xffff0000, v{VR+4*s_+w}")
        for i in range(8): A(f"v_mul_f32 v{T+i}, v{T+i}, v{T+8+i}")
        a, wl = w >> 1, w & 1
        for s_ in range(4):
            A(f"v_cvt_pk_bf16_f32 v{O + a*8 + s_*2 + wl}, v{T+s_}, v{T+4+s_}")
        if wl == 1:
            for hf in range(2):
                A(f"buffer_store_dwordx4 {vr(O+a*8+hf*4,4)}, v{10+a}, s[{SU_}:{SU_+3}], 0 offen offset:{hf*128} {store_flags}")
    A("s_waitcnt vmcnt(4)")
    for row in range(2):
        for i in range(8):
            A(f"v_dot2_f32_bf16 v{12+row}, v{GX+8*row+i}, v{GW+i}, " + ("0" if i == 0 else f"v{12+row}"))
    A("s_nop 1")
    dpp_sum(A, [12, 13])
    A("v_cvt_pk_bf16_f32 v12, v12, v13\nv_and_b32 v13, 0xffff0000, v12\nv_lshlrev_b32 v12, 16, v12")
    A("v_mul_f32 v12, 0xbfb8aa3b, v12\nv_mul_f32 v13, 0xbfb8aa3b, v13\nv_exp_f32 v12, v12\nv_exp_f32 v13, v13\ns_nop 0")
    A("v_add_f32 v12, 1.0, v12\nv_add_f32 v13, 1.0, v13\nv_rcp_f32 v12, v12\nv_rcp_f32 v13, v13\ns_nop 0")
    A("v_cvt_pk_bf16_f32 v12, v12, v13\nv_and_b32 v18, 0xffff0000, v12\nv_lshlrev_b32 v16, 16, v12")
    A("v_sub_f32 v12, 1.0, v16\nv_sub_f32 v13, 1.0, v18\nv_cvt_pk_bf16_f32 v12, v12, v13\nv_and_b32 v19, 0xffff0000, v12\nv_lshlrev_b32 v17, 16, v12")
    A(f"s_lshl_b32 s28, s{MB}, 4\ns_add_u32 s28, s28, s{NB}\ns_lshl_b32 s28, s28, 7\ns_lshl_b32 s29, s22, 4\ns_add_u32 s28, s28, s29")
    A("v_mov_b32 v9, 0\nv_cmp_eq_u32 vcc, 63, v0\ns_and_saveexec_b64 s[60:61], vcc")
    A(f"buffer_store_dwordx4 v[16:19], v9, s[{SGO}:{SGO+3}], s28 offen {store_flags}")
    srd(A, SGO, 14, 1024*128, 25 << 20)
    A(f"s_lshl_b32 s28, s2, 2\ns_add_u32 s28, s28, s22\ns_lshl_b32 s28, s28, 7\nbuffer_store_dword v9, off, s[{SGO}:{SGO+3}], s28")
    A("PP_end:")
    return kernel_text(name, A.text(), vgpr=144), 256, 0
```

```python
import sys
from common import *
import gemm1, prep, conv, gemm2
NAME = "gated_mix__ssm_conv_h3__dense_activation_relu__prompt"
def build(diag=None, n1=22, nslot=4, extra_empty=0):
    ks = [("prep_kernel",) + prep.gen_prep(), ("gemm1_kernel",) + gemm1.gen_gemm1(diag=(diag == "g1")),
          ("conv_kernel",) + conv.gen_conv(diag=(diag == "cv")), ("gemm2_kernel",) + gemm2.gen_gemm2(n1=n1, nslot=nslot, diag=(diag == "g2"))]
    hdr = ""
    for n, t, b, l in ks: hdr += f"; @launch kernel={n} grid=(256,1,1) block=({b},1,1) lds={l}\n"
    txt = "".join(t for n, t, b, l in ks)
    if extra_empty:
        for i in range(extra_empty): hdr += "; @launch kernel=empty_kernel grid=(256,1,1) block=(64,1,1) lds=0\n"
        txt += kernel_text("empty_kernel", "    s_nop 0", vgpr=8)
    return hdr + '.amdgcn_target "amdgcn-amd-amdhsa--gfx950"\n' + txt
if __name__ == "__main__":
    open(f"cdna_kernels/{NAME}.s", "w").write(build())
    open(f"v_n0.s", "w").write(build(n1=0))
    open(f"v_n28.s", "w").write(build(n1=28))
    open(f"v_e1.s", "w").write(build(extra_empty=1))
    open(f"v_e4.s", "w").write(build(extra_empty=4))
```

```python
from common import *

XS = 16384
WSB = 28672
STG = XS + WSB
NSLOT = 3

def stamp(A, diag, idx):
    if diag:
        A(f"s_memtime s[{64+4*idx}:{65+4*idx}]\ns_memrealtime s[{66+4*idx}:{67+4*idx}]")
def dump_stamps(A, n, wavereg, nwaves_log2=3):
    A("s_waitcnt lgkmcnt(0)")
    for i in range(8):
        if i < n:
            A(f"v_mov_b32 v{4+i}, s{64+4*i}\nv_mov_b32 v{12+i}, s{66+4*i}")
        else:
            A(f"v_mov_b32 v{4+i}, 0\nv_mov_b32 v{12+i}, 0")
    A(f"s_lshl_b32 s37, s2, {nwaves_log2}\ns_add_u32 s37, s37, s{wavereg}\ns_lshl_b32 s37, s37, 6\nv_mov_b32 v2, 0")
    for i in range(4):
        A(f"buffer_store_dwordx4 v[{4+4*i}:{7+4*i}], v2, s[60:63], s37 offen offset:{16*i}")

def skew_order(n, r, lag, period=4):
    key = lambda j: (j - lag - 0.5) if (j % period == r) else j
    return sorted(range(n), key=key)
def order_const(o):
    v = 0
    for i, b in enumerate(o): v |= b << (4*i)
    return v

def gen_gemm1(name="gemm1_kernel", diag=False, xcdmap="4x8", variant="V2", store_flags="", prio=True, lag=0, xf="", wf="", pro=3, exp=""):
    A = Asm()
    nw = 8 if variant == "V2" else 4
    A("s_cmp_ge_u32 s2, 256\ns_cbranch_scc1 G1_end")
    stamp(A, diag, 0)
    A(f"s_load_dwordx2 s[4:5], s[0:1], {K_Q}\ns_load_dwordx2 s[6:7], s[0:1], {K_W1}\ns_load_dwordx2 s[20:21], s[0:1], {K_WS}")
    A("v_lshrrev_b32 v1, 6, v0\nv_and_b32 v0, 63, v0\nv_readfirstlane_b32 s22, v1")
    A("s_and_b32 s23, s2, 7\ns_lshr_b32 s24, s2, 3")
    if xcdmap == "4x8":
        A("s_lshr_b32 s25, s23, 1\ns_lshl_b32 s25, s25, 2\ns_and_b32 s26, s24, 3\ns_add_u32 s25, s25, s26")
        A("s_and_b32 s26, s23, 1\ns_lshl_b32 s26, s26, 3\ns_lshr_b32 s27, s24, 2\ns_add_u32 s26, s26, s27")
    elif xcdmap == "8x4":
        A("s_and_b32 s25, s23, 1\ns_lshl_b32 s25, s25, 3\ns_and_b32 s26, s24, 7\ns_add_u32 s25, s25, s26")
        A("s_lshr_b32 s26, s23, 1\ns_lshl_b32 s26, s26, 2\ns_lshr_b32 s27, s24, 3\ns_add_u32 s26, s26, s27")
    elif xcdmap == "2x16":
        A("s_lshl_b32 s25, s23, 1\ns_and_b32 s26, s24, 1\ns_add_u32 s25, s25, s26\ns_lshr_b32 s26, s24, 1")
    MB, NB = 25, 26
    A("s_waitcnt lgkmcnt(0)")
    stamp(A, diag, 1)
    srd(A, 8, 4, S*D*2); srd(A, 12, 6, D*F*2); srd(A, 16, 20, S*F*2, WS_H)
    if diag:
        srd(A, 60, 20, 1 << 20, WS_DIAG)
    VX, VW = 236, 240
    A("s_and_b32 s28, s22, 3")
    A(f"s_lshl_b32 s29, s{MB}, 7\ns_lshl_b32 s30, s28, 5\ns_add_u32 s29, s29, s30")
    A("v_lshrrev_b32 v2, 3, v0\nv_add_u32 v2, s29, v2\nv_lshlrev_b32 v2, 11, v2")
    A("v_and_b32 v3, 7, v0\nv_lshrrev_b32 v4, 4, v0\nv_xor_b32 v3, v3, v4")
    for i in range(4):
        A(f"v_xor_b32 v5, {4*(i&1)}, v3\nv_lshlrev_b32 v5, 4, v5\nv_add_u32 v5, v5, v2\nv_add_u32 v{VX+i}, {i*8*2048}, v5")
    A(f"s_mul_i32 s29, s{NB}, 448\ns_mul_i32 s30, s28, {16*F*2}\ns_add_u32 s29, s29, s30")
    A(f"s_mov_b32 s31, {F*2}")
    for j in range(7):
        A(f"v_add_u32 v2, {j*64}, v0\nv_mul_u32_u24 v3, 2341, v2\nv_lshrrev_b32 v3, 16, v3")
        A("v_mul_u32_u24 v4, 28, v3\nv_sub_u32 v4, v2, v4")
        A("v_lshrrev_b32 v5, 2, v3\nv_and_b32 v5, 2, v5\nv_xor_b32 v4, v4, v5\nv_lshlrev_b32 v4, 4, v4")
        A(f"v_mul_lo_u32 v3, v3, s31\nv_add_u32 v3, v3, v4\nv_add_u32 v{VW+j}, s29, v3")
    A("s_lshl_b32 s32, s28, 12")
    A(f"s_mul_i32 s33, s28, 7168\ns_add_u32 s33, s33, {XS}")
    A("s_mov_b32 s36, 0")
    A(f"s_add_u32 s29, s{MB}, s{NB}\ns_and_b32 s29, s29, 3")
    for r in range(4):
        c = order_const(skew_order(16, r, lag))
        if r == 0: A(f"s_mov_b32 s50, {c & 0xffffffff}\ns_mov_b32 s51, {c >> 32}")
        else: A(f"s_cmp_eq_u32 s29, {r}\ns_cselect_b32 s50, {c & 0xffffffff}, s50\ns_cselect_b32 s51, {c >> 32}, s51")
    def dma_list():
        L = []
        for i in range(4):
            L.append(f"s_add_u32 m0, s38, {i*1024}\ns_nop 0\nbuffer_load_dwordx4 v{VX+i}, s[8:11], s34 offen {xf} lds")
        for j in range(7):
            L.append(f"s_add_u32 m0, s39, {j*1024}\ns_nop 0\nbuffer_load_dwordx4 v{VW+j}, s[12:15], s35 offen {wf} lds")
        return L
    dma_pre = f"s_and_b32 s35, s50, {3 if exp == 'allhit' else (0 if exp == 'l1hit' else 15)}\ns_lshr_b64 s[50:51], s[50:51], 4\ns_lshl_b32 s34, s35, 7\ns_mul_i32 s35, s35, {64*F*2}\ns_add_u32 s38, s36, s32\ns_add_u32 s39, s36, s33"
    dma_post = f"s_add_u32 s36, s36, {STG}\ns_cmp_eq_u32 s36, {NSLOT*STG}\ns_cselect_b32 s36, 0, s36"
    def issue_stage():
        A(dma_pre)
        for x in dma_list(): A(x)
        A(dma_post)
    if variant == "V2":
        A("s_cmp_lt_u32 s22, 4\ns_cbranch_scc1 G1_compute")
        for st in range(pro): issue_stage()
        A(f"s_waitcnt vmcnt({11*(pro-1)})\ns_barrier")
        for st in range(3-pro): issue_stage()
        A("s_mov_b32 s40, 13")
        A("G1_ld_loop:")
        A("s_waitcnt vmcnt(11)\ns_barrier")
        if exp != "nodma": issue_stage()
        A("s_sub_u32 s40, s40, 1\ns_cmp_lg_u32 s40, 0\ns_cbranch_scc1 G1_ld_loop")
        A("s_waitcnt vmcnt(11)\ns_barrier\ns_waitcnt vmcnt(0)\ns_barrier\ns_barrier")
        A("s_branch G1_end")
        A("G1_compute:")
        if prio: A("s_setprio 1")
    else:
        for st in range(3): issue_stage()
    ACC = 0
    ACC, SP, SQ = 8, 120, 164
    BX0, BX1, BWE, BWO, BWS = 208, 209, 210, 211, 212
    WX0, WX1, WWE, WWO, WWS = 213, 214, 215, 216, 217
    A("s_and_b32 s41, s22, 1\ns_lshr_b32 s42, s22, 1\ns_and_b32 s42, s42, 1")
    A("v_and_b32 v2, 15, v0\nv_lshrrev_b32 v3, 4, v0")
    A("s_lshl_b32 s43, s41, 13")
    A("v_lshrrev_b32 v4, 1, v2\nv_xor_b32 v4, v4, v3\nv_lshlrev_b32 v4, 4, v4\nv_lshlrev_b32 v5, 7, v2\nv_add_u32 v4, v4, v5")
    A(f"v_add_u32 v{BX0}, s43, v4\nv_xor_b32 v{BX1}, 64, v{BX0}")
    A("v_lshlrev_b32 v4, 3, v3\nv_lshrrev_b32 v5, 2, v2\nv_add_u32 v4, v4, v5\nv_mul_u32_u24 v4, 448, v4")
    A(f"v_and_b32 v5, 3, v2\nv_lshlrev_b32 v5, 3, v5\nv_add_u32 v4, v4, v5\nv_add_u32 v4, {XS}, v4")
    A("v_and_b32 v5, 1, v3\nv_lshlrev_b32 v5, 5, v5")
    A("s_lshl_b32 s43, s42, 8")
    A(f"v_add_u32 v6, s43, v4\nv_add_u32 v{BWE}, v6, v5\nv_sub_u32 v{BWO}, v6, v5")
    A("s_add_u32 s43, s42, 6\ns_lshl_b32 s43, s43, 5")
    A(f"v_xor_b32 v5, s43, v5\nv_add_u32 v{BWS}, v4, v5")
    for r in range(112): A(f"v_mov_b32 v{ACC+r}, 0")
    A("s_mov_b32 s44, 0")
    def upd():
        return [f"v_add_u32 v{w}, s44, v{b}" for w, b in ((WX0,BX0),(WX1,BX1),(WWE,BWE),(WWO,BWO),(WWS,BWS))]
    def reads(st, kk):
        L = []
        wx = WX0 if kk == 0 else WX1
        xs = [f"ds_read_b128 {vr(st+28+4*ts,4)}, v{wx} offset:{ts*2048}" for ts in range(4)]
        ws = []
        for tl in range(7):
            base = WWS if tl == 6 else (WWE if tl % 2 == 0 else WWO)
            off = (0 if tl == 6 else tl*32) + kk*32*448
            ws.append([f"ds_read_b64_tr_b16 {vr(st+4*tl+2*h,2)}, v{base} offset:{off + h*4*448}" for h in range(2)])
        L = ws[0] + xs
        for tl in range(1, 7): L += ws[tl]
        return L
    def mfmas(st):
        return [f"v_mfma_f32_16x16x32_bf16 {vr(ACC+(tl*4+ts)*4,4)}, {vr(st+4*tl,4)}, {vr(st+28+4*ts,4)}, {vr(ACC+(tl*4+ts)*4,4)}"
                for tl in range(7) for ts in range(4)]
    slot_adv = f"s_add_u32 s44, s44, {STG}\ns_cmp_eq_u32 s44, {NSLOT*STG}\ns_cselect_b32 s44, 0, s44"
    for x in upd(): A(x)
    stamp(A, diag, 2)
    if variant == "V1": A("s_waitcnt vmcnt(22)")
    A("s_barrier")
    stamp(A, diag, 3)
    for x in reads(SP, 0): A(x)
    A(slot_adv)
    A("s_waitcnt lgkmcnt(0)")
    if variant == "V2":
        A("s_mov_b32 s45, 16")
        A(".p2align 6\nG1_loop:")
        for x in interleave(mfmas(SP), reads(SQ, 1)): A(x)
        A("s_waitcnt lgkmcnt(0)\ns_barrier")
        m = mfmas(SQ)
        u = upd()
        fill = [u[2] + "\n" + u[0], u[3] + "\n" + u[4]]
        for x in interleave(m, fill + reads(SP, 0) + [u[1], slot_adv]): A(x)
        A("s_sub_u32 s45, s45, 1\ns_cmp_lg_u32 s45, 0\ns_waitcnt lgkmcnt(0)\ns_cbranch_scc1 G1_loop")
    else:
        def body(issue, vm):
            d = dma_list() if issue else []
            for x in interleave(mfmas(SP), reads(SQ, 1)): A(x)
            A(f"s_waitcnt vmcnt({vm}) lgkmcnt(0)\ns_barrier")
            m = mfmas(SQ); u = upd()
            fill = [u[2] + "\n" + u[0], u[3] + "\n" + u[4] + ("\n" + dma_pre if issue else "")]
            rd = reads(SP, 0)
            seq = []
            for i in range(max(len(rd), 2*len(d))):
                s_ = rd[i] if i < len(rd) else ""
                if i % 2 == 1 and i//2 < len(d): s_ += "\n" + d[i//2]
                seq.append(s_)
            tail = [u[1], slot_adv] + ([dma_post] if issue else [])
            for x in interleave(m, fill + seq + tail): A(x)
        A("s_mov_b32 s45, 13")
        A(".p2align 6\nG1_loop:")
        body(True, 11)
        A("s_sub_u32 s45, s45, 1\ns_cmp_lg_u32 s45, 0\ns_waitcnt lgkmcnt(0)\ns_cbranch_scc1 G1_loop")
        body(False, 11); A("s_waitcnt lgkmcnt(0)")
        body(False, 0); A("s_waitcnt lgkmcnt(0)")
        body(False, 0); A("s_waitcnt lgkmcnt(0)")
    stamp(A, diag, 4)
    A(f"s_mul_i32 s46, s{MB}, 112\ns_mul_i32 s47, s{NB}, 7\ns_add_u32 s46, s46, s47")
    A("s_add_u32 s48, s46, 3\ns_lshl_b32 s48, s48, 13")
    A("s_lshl_b32 s47, s42, 2\ns_add_u32 s46, s46, s47\ns_lshl_b32 s46, s46, 13")
    A("s_lshl_b32 s47, s41, 12\ns_add_u32 s46, s46, s47\ns_add_u32 s48, s48, s47")
    A("s_lshl_b32 s47, s42, 3\ns_add_u32 s48, s48, s47")
    A("v_lshlrev_b32 v2, 4, v0\ns_nop 4")
    T = SP
    n = 0
    for u in range(3):
        for ts in range(4):
            t = T + (n % 8)*4; n += 1
            for hh in range(2):
                a = ACC + ((2*u+hh)*4 + ts)*4
                A(f"v_cvt_pk_bf16_f32 v{t+2*hh}, v{a}, v{a+1}\nv_cvt_pk_bf16_f32 v{t+2*hh+1}, v{a+2}, v{a+3}")
            for r in range(4): A(f"v_pk_max_i16 v{t+r}, v{t+r}, 0")
            A(f"buffer_store_dwordx4 {vr(t,4)}, v2, s[16:19], s46 offen offset:{ts*1024} {store_flags}")
        A("s_add_u32 s46, s46, 8192")
    for ts in range(4):
        t = SQ + ts*2
        a = ACC + (6*4 + ts)*4
        A(f"v_cvt_pk_bf16_f32 v{t}, v{a}, v{a+1}\nv_cvt_pk_bf16_f32 v{t+1}, v{a+2}, v{a+3}")
        A(f"v_pk_max_i16 v{t}, v{t}, 0\nv_pk_max_i16 v{t+1}, v{t+1}, 0")
        A(f"buffer_store_dwordx2 {vr(t,2)}, v2, s[16:19], s48 offen offset:{ts*1024} {store_flags}")
    if diag:
        stamp(A, diag, 5)
        A("s_waitcnt vmcnt(0)")
        stamp(A, diag, 6)
        dump_stamps(A, 7, 22)
    A("G1_end:")
    return kernel_text(name, A.text(), vgpr=256), nw*64, NSLOT*STG
```

```python
from common import *
from gemm1 import stamp, dump_stamps, skew_order
WS_F = 25 << 20

SLOT = 32768
def gen_gemm2(name="gemm2_kernel", n1=22, nslot=4, diag=False, hflags="", prio=True, lag=0, sig_at=5, wf="", pflags="sc1", exp=""):
    n2 = 56 - 2*n1
    NT = n1 + n2
    A = Asm()
    A("s_cmp_ge_u32 s2, 256\ns_cbranch_scc1 G2_end")
    stamp(A, diag, 0)
    A(f"s_load_dwordx2 s[4:5], s[0:1], {K_Q}\ns_load_dwordx2 s[6:7], s[0:1], {K_W2}\ns_load_dwordx4 s[16:19], s[0:1], {K_OUT}\ns_load_dwordx2 s[20:21], s[0:1], {K_WS}")
    A("v_lshrrev_b32 v1, 6, v0\nv_and_b32 v0, 63, v0\nv_readfirstlane_b32 s22, v1")
    MB, DBK, KH = 25, 26, 27
    A(f"s_and_b32 s23, s2, 7\ns_lshr_b32 s24, s2, 3\ns_and_b32 s{KH}, s23, 1")
    A(f"s_lshr_b32 s{MB}, s23, 1\ns_lshl_b32 s{MB}, s{MB}, 2\ns_and_b32 s28, s24, 3\ns_add_u32 s{MB}, s{MB}, s28\ns_lshr_b32 s{DBK}, s24, 2")
    A("s_waitcnt lgkmcnt(0)")
    stamp(A, diag, 1)
    SH_, SW_ = 8, 12
    srd(A, SH_, 20, S*F*2, WS_H); srd(A, SW_, 6, F*D*2)
    if diag: srd(A, 60, 20, 1 << 20, WS_DIAG)
    A("s_cmp_lt_u32 s22, 4\ns_cbranch_scc1 G2_compute")
    A("s_and_b32 s28, s22, 3")
    VH, VW1, VW2 = 2, 4, 8
    A(f"v_lshlrev_b32 v{VH}, 4, v0")
    A(f"s_mul_i32 s34, s{MB}, {112*8192}\ns_lshl_b32 s29, s28, 12\ns_add_u32 s34, s34, s29\ns_add_u32 s40, s34, {2*n1*16384}")
    A(f"s_mul_i32 s29, s{KH}, {n1*16384}\ns_add_u32 s34, s34, s29")
    A(f"s_lshl_b32 s29, s28, 15\ns_lshl_b32 s30, s{DBK}, 8\ns_add_u32 s29, s29, s30")
    A("v_lshrrev_b32 v12, 4, v0\nv_and_b32 v13, 15, v0\nv_lshlrev_b32 v14, 1, v12\nv_xor_b32 v13, v13, v14\nv_lshlrev_b32 v12, 11, v12\nv_add_u32 v12, s29, v12")
    for i in range(4):
        A(f"v_xor_b32 v14, {8*(i&1)}, v13\nv_lshlrev_b32 v14, 4, v14\nv_add_u32 v14, v14, v12\nv_add_u32 v{VW1+i}, {i*4*2048}, v14")
    A(f"s_lshl_b32 s30, s{KH}, 7\ns_add_u32 s29, s29, s30")
    A("v_lshrrev_b32 v12, 3, v0\nv_lshlrev_b32 v12, 11, v12\nv_add_u32 v12, s29, v12\nv_and_b32 v13, 7, v0\nv_lshrrev_b32 v14, 4, v0\nv_lshlrev_b32 v14, 1, v14\nv_xor_b32 v13, v13, v14\nv_lshlrev_b32 v13, 4, v13")
    A(f"v_add_u32 v{VW2}, v12, v13\nv_add_u32 v{VW2+1}, {8*2048}, v{VW2}")
    A(f"s_mul_i32 s35, s{KH}, {n1*64*2048}")
    A(f"s_lshl_b32 s32, s28, 12\ns_add_u32 s33, s32, 16384\ns_lshl_b32 s41, s28, 11\ns_add_u32 s41, s41, 16384\ns_mov_b32 s36, 0")
    A(f"s_add_u32 s29, s{MB}, s{DBK}\ns_and_b32 s29, s29, 3")
    for r in range(4):
        cs = []
        for n in (n1, n2):
            o = skew_order(n, r, lag); c = 0
            for i, b_ in enumerate(o):
                dlt = b_ - i + 1
                assert 0 <= dlt <= 3
                c |= dlt << (2*i)
            cs.append(c)
        w = [cs[0] & 0xffffffff, (cs[0] >> 32) & 0xffffffff, cs[1] & 0xffffffff, (cs[1] >> 32) & 0xffffffff, (cs[1] >> 64) & 0xffffffff, (cs[1] >> 96) & 0xffffffff]
        if r == 0:
            for i in range(6): A(f"s_mov_b32 s{50+i}, {w[i]}")
        else:
            A(f"s_cmp_eq_u32 s29, {r}")
            for i in range(6): A(f"s_cselect_b32 s{50+i}, {w[i]}, s{50+i}")
    A(f"s_sub_u32 s34, s34, 16384\ns_sub_u32 s40, s40, 16384\ns_sub_u32 s35, s35, {64*2048}")
    def issue(ph):
        if ph == 1:
            A("s_and_b32 s56, s50, 3\ns_lshr_b64 s[50:51], s[50:51], 2")
        else:
            A("s_and_b32 s56, s52, 3\ns_lshr_b64 s[52:53], s[52:53], 2\ns_lshl_b32 s57, s54, 30\ns_or_b32 s53, s53, s57\ns_lshr_b64 s[54:55], s[54:55], 2")
        A("s_lshl_b32 s57, s56, 17\ns_lshl_b32 s56, s56, 14\ns_add_u32 s56, s56, s34\ns_add_u32 s57, s57, s35")
        if exp == "allhit": A("s_and_b32 s56, s56, 0x1ffff\ns_and_b32 s57, s57, 0xfffff")
        if exp == "nodma": return
        A("s_add_u32 m0, s36, s32\ns_add_u32 s39, s36, " + ("s33" if ph == 1 else "s41"))
        for i in range(4): A(f"buffer_load_dwordx4 v{VH}, s[{SH_}:{SH_+3}], s56 offen offset:{1024*i} {hflags} lds")
        for i in range(4 if ph == 1 else 2):
            A(f"s_add_u32 m0, s39, {1024*i}\ns_nop 0\nbuffer_load_dwordx4 v{(VW1 if ph == 1 else VW2)+i}, s[{SW_}:{SW_+3}], s57 offen {wf} lds")
        A(f"s_add_u32 s34, s34, 16384\ns_add_u32 s35, s35, {64*2048}\ns_add_u32 s36, s36, {SLOT}\ns_cmp_eq_u32 s36, {nslot*SLOT}\ns_cselect_b32 s36, 0, s36")
    def cnt(st): return 8 if st < n1 else 6
    def switch():
        A(f"s_mov_b32 s34, s40\ns_mov_b32 s35, {((2*n1-1)*64*2048) & 0xffffffff}")
    events = []
    issued = 0
    def do_issue(st):
        if st == n1: switch()
        issue(1 if st < n1 else 2)
    for st in range(2): do_issue(st)
    A(f"s_waitcnt vmcnt({cnt(1)})\ns_barrier")
    for st in range(2, nslot): do_issue(st)
    seq = []
    for k in range(1, NT+1):
        last_issued = min(k + nslot - 2, NT-1)
        w = sum(cnt(s_) for s_ in range(k+1, last_issued+1))
        st = k + nslot - 1
        seq.append((w, None if st >= NT else (1 if st < n1 else 2), st == n1))
    i = 0; lab = 0
    while i < len(seq):
        j = i
        while j < len(seq) and seq[j] == seq[i]: j += 1
        n = j - i; w, ph, sw = seq[i]
        if n > 1: A(f"s_mov_b32 s42, {n}\nG2_ld{lab}:")
        A(f"s_waitcnt vmcnt({w})\ns_barrier")
        if sw: switch()
        if ph: issue(ph)
        if n > 1: A(f"s_sub_u32 s42, s42, 1\ns_cmp_lg_u32 s42, 0\ns_cbranch_scc1 G2_ld{lab}")
        lab += 1; i = j
    A("s_branch G2_end")
    A("G2_compute:")
    if prio: A("s_setprio 1")
    ACC, SP, SQ = 8, 72, 104
    BH, BW1, BW2 = 136, 137, 141
    WH, WW = 143, 144
    A("s_and_b32 s41, s22, 1\ns_lshr_b32 s42, s22, 1")
    A("v_and_b32 v2, 15, v0\nv_lshrrev_b32 v3, 4, v0\nv_lshrrev_b32 v4, 2, v2\nv_and_b32 v5, 3, v2")
    A(f"s_lshl_b32 s43, s41, 12\nv_lshlrev_b32 v6, 4, v0\nv_add_u32 v{BH}, s43, v6")
    A("v_lshlrev_b32 v6, 2, v3\nv_add_u32 v6, v6, v4")
    A("v_lshlrev_b32 v5, 3, v5\nv_add_u32 v5, 16384, v5")
    A(f"s_lshl_b32 s43, s{KH}, 2\ns_lshl_b32 s44, s42, 1\ns_add_u32 s43, s43, s44")
    A("v_and_b32 v7, 7, v6\nv_xor_b32 v7, s43, v7\nv_lshlrev_b32 v1, 8, v6\nv_add_u32 v1, v1, v5")
    for tl in range(4):
        x = (tl & 1) + (4 if tl >= 2 else 0)
        A(f"v_xor_b32 v4, {x}, v7\nv_lshlrev_b32 v4, 5, v4\nv_add_u32 v{BW1+tl}, v4, v1")
    A("v_lshrrev_b32 v7, 1, v6\nv_and_b32 v7, 3, v7\nv_xor_b32 v7, s44, v7\nv_lshlrev_b32 v1, 7, v6\nv_add_u32 v1, v1, v5")
    for tl in range(2):
        A(f"v_xor_b32 v4, {tl}, v7\nv_lshlrev_b32 v4, 5, v4\nv_add_u32 v{BW2+tl}, v4, v1")
    for r in range(64): A(f"v_mov_b32 v{ACC+r}, 0")
    A("s_mov_b32 s44, 0")
    def upd(ph):
        L = [f"v_add_u32 v{WH}, s44, v{BH}"]
        for tl in range(4 if ph == 1 else 2): L.append(f"v_add_u32 v{WW+tl}, s44, v{(BW1 if ph == 1 else BW2)+tl}")
        return L
    def reads(st, kk, ph):
        pitch = 256 if ph == 1 else 128
        hs = [f"ds_read_b128 {vr(st+16+4*ts,4)}, v{WH} offset:{kk*8192+ts*1024}" for ts in range(4)]
        ws = [[f"ds_read_b64_tr_b16 {vr(st+4*tl+2*h,2)}, v{WW+tl} offset:{(32*kk+16*h)*pitch}" for h in range(2)] for tl in range(4 if ph == 1 else 2)]
        L = ws[0] + hs
        for x in ws[1:]: L += x
        return L
    def mfmas(st, ph):
        return [f"v_mfma_f32_16x16x32_bf16 {vr(ACC+(tl*4+ts)*4,4)}, {vr(st+4*tl,4)}, {vr(st+16+4*ts,4)}, {vr(ACC+(tl*4+ts)*4,4)}"
                for tl in range(4 if ph == 1 else 2) for ts in range(4)]
    slot_adv = f"s_add_u32 s44, s44, {SLOT}\ns_cmp_eq_u32 s44, {nslot*SLOT}\ns_cselect_b32 s44, 0, s44"
    def pairs(L): return ["\n".join(L[i:i+2]) for i in range(0, len(L), 2)]
    def body(ph, nph):
        r1 = reads(SQ, 1, ph)
        if ph == 2: r1 = pairs(r1)
        m = interleave(mfmas(SP, ph), r1 + [slot_adv])
        for x in m: A(x)
        A("s_waitcnt lgkmcnt(0)")
        for x in upd(nph): A(x)
        A("s_barrier")
        r0 = reads(SP, 0, nph)
        if ph == 2: r0 = pairs(r0)
        for x in interleave(mfmas(SQ, ph), r0): A(x)
    ph0 = 1 if n1 > 0 else 2
    for x in upd(ph0): A(x)
    stamp(A, diag, 2)
    A("s_barrier")
    stamp(A, diag, 3)
    for x in reads(SP, 0, ph0): A(x)
    A("s_waitcnt lgkmcnt(0)")
    SP_, SO_, SQ_, SZ_, SG_, SD_ = 48, 52, 56, 4, 28, 32
    srd(A, SO_, 16, S*D*2); srd(A, SQ_, 4, S*D*2); srd(A, SD_, 20, 1024*128, WS_F)
    srd(A, SP_, 20, 256*32768, WS_P); srd(A, SZ_, 20, S*D*2, WS_Z); srd(A, SG_, 20, 256*128, WS_G)
    VL = 148
    A(f"v_lshlrev_b32 v{VL}, 4, v0")
    if n1 > 0:
        if n1 > 1:
            A(f"s_mov_b32 s45, {n1-1}\n.p2align 6\nG2_loop1:")
            body(1, 1)
            A("s_sub_u32 s45, s45, 1\ns_cmp_lg_u32 s45, 0\ns_waitcnt lgkmcnt(0)\ns_cbranch_scc1 G2_loop1")
        body(1, 2)
        stamp(A, diag, 4)
        A("s_lshl_b32 s46, s2, 2\ns_add_u32 s46, s46, s22\ns_lshl_b32 s46, s46, 13\ns_add_u32 s47, s46, 4096\ns_nop 4")
        for i in range(8):
            A(f"buffer_store_dwordx4 {vr(ACC+32+4*i,4)}, v{VL}, s[{SP_}:{SP_+3}], s{46+i//4} offen offset:{1024*(i%4)} {pflags}")
        A("s_waitcnt lgkmcnt(0)")
    else:
        stamp(A, diag, 4)
    def signal():
        A("s_waitcnt vmcnt(0)")
        A("s_lshl_b32 s46, s2, 2\ns_add_u32 s46, s46, s22\ns_lshl_b32 s46, s46, 7")
        A(f"v_mov_b32 v1, 1\ns_mov_b64 s[38:39], exec\ns_mov_b64 exec, 1\nbuffer_store_dword v1, off, s[{SD_}:{SD_+3}], s46 sc1\ns_mov_b64 exec, s[38:39]")
    sig_at = min(n2, sig_at)
    if n2 > 0:
        if n1 > 0:
            A(f"s_mov_b32 s45, {sig_at}\n.p2align 6\nG2_loop2a:")
            body(2, 2)
            A("s_sub_u32 s45, s45, 1\ns_cmp_lg_u32 s45, 0\ns_waitcnt lgkmcnt(0)\ns_cbranch_scc1 G2_loop2a")
            signal()
        rem = n2 - (sig_at if n1 > 0 else 0)
        if rem > 0:
            A(f"s_mov_b32 s45, {rem}\n.p2align 6\nG2_loop2:")
            body(2, 2)
            A("s_sub_u32 s45, s45, 1\ns_cmp_lg_u32 s45, 0\ns_waitcnt lgkmcnt(0)\ns_cbranch_scc1 G2_loop2")
    else:
        signal()
    stamp(A, diag, 5)
    QR, ZR, GR, PR = 72, 88, 104, 152
    A(f"s_lshl_b32 s46, s{DBK}, 7\ns_lshl_b32 s47, s{KH}, 6\ns_add_u32 s46, s46, s47\ns_lshl_b32 s47, s42, 5\ns_add_u32 s46, s46, s47")
    A("v_and_b32 v4, 1, v3\nv_lshlrev_b32 v4, 4, v4\nv_lshrrev_b32 v5, 1, v3\nv_lshlrev_b32 v5, 3, v5\nv_add_u32 v4, v4, v5\nv_add_u32 v4, s46, v4")
    A(f"s_lshl_b32 s46, s{MB}, 7\ns_lshl_b32 s47, s41, 6\ns_add_u32 s46, s46, s47")
    A("v_add_u32 v5, s46, v2\nv_lshlrev_b32 v6, 11, v5\nv_lshlrev_b32 v7, 1, v4\nv_add_u32 v6, v6, v7")
    A("v_lshlrev_b32 v7, 12, v4\ns_lshl_b32 s47, s46, 3\nv_add_u32 v7, s47, v7\nv_lshlrev_b32 v1, 4, v2\nv_add_u32 v7, v7, v1")
    A("v_lshrrev_b32 v1, 3, v5\nv_lshlrev_b32 v1, 7, v1\nv_and_b32 v5, 7, v5\nv_lshlrev_b32 v5, 3, v5\nv_add_u32 v5, v5, v1")
    A("s_mov_b32 s47, 16384")
    for ts in range(4):
        A(f"s_mov_b32 s46, {ts*16*2048}\nbuffer_load_dwordx4 {vr(QR+4*ts,4)}, v6, s[{SQ_}:{SQ_+3}], s46 offen")
    for tp in range(2):
        A(f"buffer_load_dwordx4 {vr(ZR+8*tp,4)}, v7, s[{SZ_}:{SZ_+3}], 0 offen offset:{256*tp} {hflags}")
        A(f"buffer_load_dwordx4 {vr(ZR+8*tp+4,4)}, v7, s[{SZ_}:{SZ_+3}], s47 offen offset:{256*tp} {hflags}")
    for ts in range(4):
        A(f"buffer_load_dwordx2 {vr(GR+2*ts,2)}, v5, s[{SG_}:{SG_+3}], 0 offen offset:{256*ts} {hflags}")
    if n1 > 0:
        A("s_xor_b32 s46, s2, 1\ns_lshl_b32 s46, s46, 2\ns_add_u32 s46, s46, s22\ns_lshl_b32 s37, s46, 7\ns_mov_b32 s45, 0x4000")
        A(f"G2_poll:\nbuffer_load_dword v1, off, s[{SD_}:{SD_+3}], s37 sc1\ns_waitcnt vmcnt(0)\nv_readfirstlane_b32 s36, v1")
        A("s_sub_u32 s45, s45, 1\ns_cmp_eq_u32 s45, 0\ns_cbranch_scc1 G2_go\ns_cmp_eq_u32 s36, 1\ns_cbranch_scc0 G2_poll\nG2_go:")
        A("s_lshl_b32 s46, s46, 13\ns_add_u32 s47, s46, 4096")
        for i in range(8):
            A(f"buffer_load_dwordx4 {vr(PR+4*i,4)}, v{VL}, s[{SP_}:{SP_+3}], s{46+i//4} offen offset:{1024*(i%4)} sc1")
        for i in range(8):
            A(f"s_waitcnt vmcnt({7-i})")
            for j in range(4): A(f"v_add_f32 v{ACC+4*i+j}, v{ACC+4*i+j}, v{PR+4*i+j}")
    else:
        A("s_waitcnt vmcnt(0)")
    A("s_nop 1")
    T = 112
    for ts in range(4):
        X, Y = ACC + ts*4, ACC + 16 + ts*4
        for j in range(4): A(f"v_permlane16_swap_b32 v{X+j}, v{Y+j}")
        g, og = GR+2*ts, GR+2*ts+1
        for j in range(8):
            b = (X if j < 4 else Y) + (j & 3)
            q = QR + 4*ts + j//2
            z = ZR + 8*(ts//2) + 4*(j//4) + 2*(ts & 1) + (j & 3)//2
            if j % 2 == 0: A(f"v_lshlrev_b32 v{T}, 16, v{q}\nv_lshlrev_b32 v{T+1}, 16, v{z}")
            else: A(f"v_and_b32 v{T}, 0xffff0000, v{q}\nv_and_b32 v{T+1}, 0xffff0000, v{z}")
            A(f"v_mul_f32 v{T}, v{T}, v{T+1}\nv_mul_f32 v{b}, v{b}, v{og}\nv_fmac_f32 v{b}, v{T}, v{g}")
        O = 116 + 4*ts
        A(f"v_cvt_pk_bf16_f32 v{O}, v{X}, v{X+1}\nv_cvt_pk_bf16_f32 v{O+1}, v{X+2}, v{X+3}\nv_cvt_pk_bf16_f32 v{O+2}, v{Y}, v{Y+1}\nv_cvt_pk_bf16_f32 v{O+3}, v{Y+2}, v{Y+3}")
        A(f"s_mov_b32 s46, {ts*16*2048}\nbuffer_store_dwordx4 {vr(O,4)}, v6, s[{SO_}:{SO_+3}], s46 offen")
    if diag:
        stamp(A, diag, 6)
        A("s_waitcnt vmcnt(0)")
        stamp(A, diag, 7)
        dump_stamps(A, 8, 22)
    A("G2_end:")
    return kernel_text(name, A.text(), vgpr=192), 512, nslot*SLOT
```

```python
import sys
from common import *
import gemm1, prep, conv, gemm2
NAME = "gated_mix__ssm_conv_h3__dense_activation_relu__prompt"
def build(diag=None, extra_empty=0, g1={}, **g2):
    ks = [("prep_kernel",) + prep.gen_prep(), ("gemm1_kernel",) + gemm1.gen_gemm1(diag=(diag == "g1"), **g1),
          ("conv_kernel",) + conv.gen_conv(diag=(diag == "cv")), ("gemm2_kernel",) + gemm2.gen_gemm2(diag=(diag == "g2"), **g2)]
    hdr = ""
    for n, t, b, l in ks: hdr += f"; @launch kernel={n} grid=(256,1,1) block=({b},1,1) lds={l}\n"
    txt = "".join(t for n, t, b, l in ks)
    if extra_empty:
        for i in range(extra_empty): hdr += "; @launch kernel=empty_kernel grid=(256,1,1) block=(64,1,1) lds=0\n"
        txt += kernel_text("empty_kernel", "    s_nop 0", vgpr=8)
    return hdr + '.amdgcn_target "amdgcn-amd-amdhsa--gfx950"\n' + txt
if __name__ == "__main__":
    g1 = dict(lag=1, pro=2)
    open(f"cdna_kernels/{NAME}.s", "w").write(build(g1=g1, n1=28, lag=2))
    open(f"v_a.s", "w").write(build(g1=dict(lag=0, pro=2), n1=28, lag=2))
    open(f"v_b.s", "w").write(build(g1=g1, n1=28, lag=0))
    open(f"v_c.s", "w").write(build(g1=g1, n1=0, lag=2))
    open(f"v_d.s", "w").write(build(g1=dict(lag=1, pro=2, store_flags="sc1"), n1=28, lag=2))
```
